```python
import torch

def _softmax(x, axis=-1):
    return torch.softmax(x, dim=axis)
def _gelu(x):
    return torch.nn.functional.gelu(x, approximate="tanh")
def _silu(x):
    return torch.nn.functional.silu(x)
def _sigmoid(x):
    return torch.sigmoid(x)
def _layernorm(x, axis=-1, eps=1e-5):
    m = x.mean(dim=axis, keepdim=True)
    v = x.var(dim=axis, keepdim=True, unbiased=False)
    return (x - m) / torch.sqrt(v + eps)
def _scatter_add(tgt, idx, src, axis=0):
    return tgt.clone().index_add_(axis, idx, src)
def _segment_sum(src, seg, n):
    out = torch.zeros((n,) + src.shape[1:], dtype=src.dtype)
    return out.index_add_(0, seg, src)
def _pad(x, pw):
    flat = tuple(v for pair in reversed(pw) for v in pair)
    return torch.nn.functional.pad(x, flat)

kernel_name = 'standalone__grn__sampling'

def setup_inputs():

    _w = (lambda a: (lambda t: t.to(torch.bfloat16) if t.is_floating_point() else t)(torch.as_tensor(a)))
    B, S, D = 1024, 32, 448
    return {
        "x": _w((lambda *s: torch.randn(*s, dtype=torch.bfloat16) * 0.05)(B, S, D)),
        "g": _w((lambda *s: torch.randn(*s, dtype=torch.bfloat16) * 0.4)(D) * 0.1),
        "b": _w((lambda *s: torch.randn(*s, dtype=torch.bfloat16) * 0.1)(D) * 0.1),
    }

def reference(x, g, b):
    gx = torch.sqrt((x * x).sum(axis=-2, keepdims=True))
    nx = gx / (gx.mean(axis=-1, keepdims=True) + 1e-6)
    return g * (x * nx) + b + x
```

```python
import sys, argparse

B, S, D = 1024, 32, 448
ROWB = D * 2
BATCHB = S * ROWB
TOTAL = B * BATCHB

HEADER = """; Kernarg layout (48 bytes): x @0, g @8, b @16, out @24, debug @32, ws @40
"""

def emit_stamp_tail(e, nw):
    e("    s_memrealtime s[48:49]")
    e("    s_waitcnt vmcnt(0)")
    e("    s_memrealtime s[52:53]")
    e("    s_waitcnt lgkmcnt(0)")
    e("    s_mov_b32 s60, s50")
    e("    s_and_b32 s61, s51, 0xffff")
    e("    s_mov_b32 s62, 0x1000000")
    e("    s_mov_b32 s63, 0x20000")
    e("    s_mov_b64 exec, 1")
    e("    v_lshrrev_b32 v1, 6, v0")
    e(f"    s_mul_i32 s64, s64, {nw}")
    e("    v_add_u32 v1, s64, v1")
    e("    v_lshlrev_b32 v1, 6, v1")
    for i, sr in enumerate((40, 42, 44, 46, 48, 52)):
        e(f"    v_mov_b32 v2, s{sr}")
        e(f"    buffer_store_dword v2, v1, s[60:63], 0 offen offset:{4*i}")
    e("    s_getreg_b32 s65, hwreg(HW_REG_XCC_ID, 0, 4)")
    e("    v_mov_b32 v2, s65")
    e("    buffer_store_dword v2, v1, s[60:63], 0 offen offset:24")
    e("    s_getreg_b32 s65, hwreg(HW_REG_HW_ID)")
    e("    v_mov_b32 v2, s65")
    e("    buffer_store_dword v2, v1, s[60:63], 0 offen offset:28")

def gen(nw=4, ld_flags="", st_flags="", lds=None, keep=True, pk=True, gb_first=False, nostore=False, stamp=False, xcdmap=False, noload=False, name="standalone__grn__sampling"):
    rows = S // nw
    L = []
    def e(line):
        if noload and "buffer_load_dwordx4" in line and "s[12:15]" in line:
            return
        L.append(line)
    need_lds = nw * 2 * 896 if nw > 1 else 0
    lds = need_lds if lds is None else max(lds, need_lds)
    e(HEADER.rstrip())
    e(f"; @launch grid=({B},1,1) block=({64*nw},1,1) lds={lds}")
    e('.amdgcn_target "amdgcn-amd-amdhsa--gfx950"')
    e(".text")
    e(f".globl {name}_kernel")
    e(".p2align 8")
    e(f".type {name}_kernel,@function")
    e(f"{name}_kernel:")
    e(f"    s_cmp_ge_u32 s2, {B}")
    e("    s_cbranch_scc1 L_end")
    if stamp:
        e("    s_memrealtime s[40:41]")
        e("    s_load_dwordx2 s[50:51], s[0:1], 40")
        e("    s_mov_b32 s64, s2")
        pass
    e("    s_load_dwordx8 s[4:11], s[0:1], 0")
    if xcdmap:
        e("    s_and_b32 s33, s2, 7")
        e("    s_lshl_b32 s33, s33, 7")
        e("    s_lshr_b32 s2, s2, 3")
        e("    s_add_u32 s2, s2, s33")
    V_OFF, V_GOFF, V_SUM, V_K, V_LW, V_LR, V_T = 1, 2, 3, 4, 5, 6, 7
    ACC = 8
    G = 16
    BB = 24
    TMP = 32
    early = nw <= 2
    RD = 40 if early else 16
    GRAW = (56 if nw == 2 else 40) if early else 48
    DATA = GRAW + 8
    ndata = rows * 8 if keep else rows * 4
    nv = DATA + ndata
    def raw(j):
        return DATA + 8 * j + 4 if keep else DATA + 4 * j
    e(f"    v_and_b32 v{V_GOFF}, 63, v0")
    e(f"    v_lshlrev_b32 v{V_GOFF}, 4, v{V_GOFF}")
    e(f"    s_mul_i32 s3, s2, {BATCHB}")
    if nw > 1:
        e(f"    v_lshrrev_b32 v{V_T}, 6, v0")
        e(f"    v_mul_u32_u24 v{V_OFF}, {rows*ROWB}, v{V_T}")
        e(f"    v_mul_u32_u24 v{V_LW}, {2*ROWB}, v{V_T}")
        e(f"    v_add3_u32 v{V_OFF}, v{V_OFF}, v{V_GOFF}, s3")
        e(f"    v_add_u32 v{V_LW}, v{V_LW}, v{V_GOFF}")
    else:
        e(f"    v_add_u32 v{V_OFF}, s3, v{V_GOFF}")
    e(f"    v_mov_b32 v{V_SUM}, 0")
    e(f"    v_mov_b32 v{V_K}, 0x3b124925")
    ngrp = (rows + 3) // 4
    for gidx in range(1, ngrp):
        e(f"    s_mov_b32 s{30+gidx}, {gidx*4*ROWB}")
    e("    s_mov_b32 exec_lo, -1")
    e("    s_mov_b32 exec_hi, 0x00ffffff")
    e("    s_waitcnt lgkmcnt(0)")
    if stamp:
        e("    s_memrealtime s[42:43]")
    for (base, src, size) in ((12, 4, TOTAL), (20, 6, ROWB), (24, 8, ROWB), (16, 10, TOTAL)):
        e(f"    s_mov_b32 s{base}, s{src}")
        e(f"    s_and_b32 s{base+1}, s{src+1}, 0xffff")
        e(f"    s_mov_b32 s{base+2}, {size}")
        e(f"    s_mov_b32 s{base+3}, 0x20000")
        if base == 12 and not gb_first:
            for j in range(rows):
                so = "0" if j < 4 else f"s{30 + j//4}"
                e(f"    buffer_load_dwordx4 v[{raw(j)}:{raw(j)+3}], v{V_OFF}, s[12:15], {so} offen offset:{(j%4)*ROWB} {ld_flags}".rstrip())
    def ld_gb():
        e(f"    buffer_load_dwordx4 v[{GRAW}:{GRAW+3}], v{V_GOFF}, s[20:23], 0 offen")
        e(f"    buffer_load_dwordx4 v[{GRAW+4}:{GRAW+7}], v{V_GOFF}, s[24:27], 0 offen")
    ld_gb()
    if gb_first:
        for j in range(rows):
            so = "0" if j < 4 else f"s{30 + j//4}"
            e(f"    buffer_load_dwordx4 v[{raw(j)}:{raw(j)+3}], v{V_OFF}, s[12:15], {so} offen offset:{(j%4)*ROWB} {ld_flags}".rstrip())
    e("    s_mov_b32 s28, 0xffff0000")
    tail = 0 if gb_first else 2
    def unpack(dst, src):
        for k in range(4):
            e(f"    v_lshlrev_b32 v{dst+2*k}, 16, v{src+k}")
            e(f"    v_and_b32 v{dst+2*k+1}, s28, v{src+k}")
    for j in range(rows):
        e(f"    s_waitcnt vmcnt({rows-1-j+tail})")
        if stamp and j == 0:
            e("    s_memrealtime s[44:45]")
        if stamp and j == rows - 1:
            e("    s_memrealtime s[46:47]")
        u = DATA + 8 * j if keep else TMP
        unpack(u, raw(j))
        if pk:
            for k in range(4):
                a = ACC + 2 * k
                x = u + 2 * k
                if j == 0:
                    e(f"    v_pk_mul_f32 v[{a}:{a+1}], v[{x}:{x+1}], v[{x}:{x+1}]")
                else:
                    e(f"    v_pk_fma_f32 v[{a}:{a+1}], v[{x}:{x+1}], v[{x}:{x+1}], v[{a}:{a+1}]")
        else:
            for k in range(8):
                if j == 0:
                    e(f"    v_mul_f32 v{ACC+k}, v{u+k}, v{u+k}")
                else:
                    e(f"    v_fmac_f32 v{ACC+k}, v{u+k}, v{u+k}")
    if nw > 1:
        e(f"    ds_write_b128 v{V_LW}, v[{ACC}:{ACC+3}]")
        e(f"    ds_write_b128 v{V_LW}, v[{ACC+4}:{ACC+7}] offset:{ROWB}")
    if early:
        e("    s_waitcnt vmcnt(0)")
        unpack(G, GRAW)
        unpack(BB, GRAW + 4)
    if nw > 1:
        e("    s_waitcnt lgkmcnt(0)")
        e("    s_barrier")
        for w0 in range(0, nw, 4):
            n = min(4, nw - w0)
            for w in range(n):
                for h in range(2):
                    r = RD + 8 * w + 4 * h
                    e(f"    ds_read_b128 v[{r}:{r+3}], v{V_GOFF} offset:{(w0+w)*2*ROWB + h*ROWB}")
            if n == 2:
                e("    s_waitcnt lgkmcnt(0)")
                for k in range(0, 8, 2):
                    e(f"    v_pk_add_f32 v[{ACC+k}:{ACC+k+1}], v[{RD+k}:{RD+k+1}], v[{RD+8+k}:{RD+8+k+1}]")
            else:
                e("    s_waitcnt lgkmcnt(4)")
                for k in range(0, 8, 2):
                    e(f"    v_pk_add_f32 v[{RD+k}:{RD+k+1}], v[{RD+k}:{RD+k+1}], v[{RD+8+k}:{RD+8+k+1}]")
                e("    s_waitcnt lgkmcnt(0)")
                for k in range(0, 8, 2):
                    e(f"    v_pk_add_f32 v[{RD+16+k}:{RD+16+k+1}], v[{RD+16+k}:{RD+16+k+1}], v[{RD+24+k}:{RD+24+k+1}]")
                if w0 == 0:
                    for k in range(0, 8, 2):
                        e(f"    v_pk_add_f32 v[{ACC+k}:{ACC+k+1}], v[{RD+k}:{RD+k+1}], v[{RD+16+k}:{RD+16+k+1}]")
                else:
                    for k in range(0, 8, 2):
                        e(f"    v_pk_add_f32 v[{RD+k}:{RD+k+1}], v[{RD+k}:{RD+k+1}], v[{RD+16+k}:{RD+16+k+1}]")
                    for k in range(0, 8, 2):
                        e(f"    v_pk_add_f32 v[{ACC+k}:{ACC+k+1}], v[{ACC+k}:{ACC+k+1}], v[{RD+k}:{RD+k+1}]")
    for k in range(8):
        e(f"    v_sqrt_f32 v{ACC+k}, v{ACC+k}")
    if early:
        e("    s_nop 0")
    else:
        e("    s_waitcnt vmcnt(0)")
        unpack(G, GRAW)
        unpack(BB, GRAW + 4)
    for k in range(4):
        e(f"    v_add_f32 v{TMP+k}, v{ACC+2*k}, v{ACC+2*k+1}")
    e(f"    v_add_f32 v{TMP}, v{TMP}, v{TMP+1}")
    e(f"    v_add_f32 v{TMP+2}, v{TMP+2}, v{TMP+3}")
    e(f"    v_add_f32 v{V_SUM}, v{TMP}, v{TMP+2}")
    e("    s_mov_b64 exec, -1")
    gi = 0
    def filler(n):
        nonlocal gi
        for _ in range(n):
            if gi < 8:
                e(f"    v_mul_f32 v{G+gi}, v{G+gi}, v{ACC+gi}")
                gi += 1
            else:
                e("    s_nop 0")
    filler(2)
    for sh in (1, 2, 4, 8):
        e(f"    v_add_f32_dpp v{V_SUM}, v{V_SUM}, v{V_SUM} row_shr:{sh} row_mask:0xf bank_mask:0xf bound_ctrl:1")
        filler(2)
    e(f"    v_add_f32_dpp v{V_SUM}, v{V_SUM}, v{V_SUM} row_bcast:15 row_mask:0xa bank_mask:0xf")
    filler(2)
    e(f"    v_add_f32_dpp v{V_SUM}, v{V_SUM}, v{V_SUM} row_bcast:31 row_mask:0xc bank_mask:0xf")
    while gi < 8:
        filler(1)
    e(f"    v_fmaak_f32 v{V_SUM}, v{V_SUM}, v{V_K}, 0x358637bd")
    e(f"    v_rcp_f32 v{V_SUM}, v{V_SUM}")
    e("    s_nop 0")
    e(f"    v_readlane_b32 s29, v{V_SUM}, 63")
    e("    s_mov_b32 exec_lo, -1")
    e("    s_mov_b32 exec_hi, 0x00ffffff")
    e("    s_nop 0")
    for k in range(8):
        e(f"    v_fma_f32 v{G+k}, v{G+k}, s29, 1.0")
    for j in range(rows):
        if keep:
            u = DATA + 8 * j
            o = u
        else:
            u = TMP
            o = raw(j)
            unpack(u, raw(j))
        if pk:
            for k in range(4):
                e(f"    v_pk_fma_f32 v[{u+2*k}:{u+2*k+1}], v[{u+2*k}:{u+2*k+1}], v[{G+2*k}:{G+2*k+1}], v[{BB+2*k}:{BB+2*k+1}]")
        else:
            for k in range(8):
                e(f"    v_fma_f32 v{u+k}, v{u+k}, v{G+k}, v{BB+k}")
        for k in range(4):
            e(f"    v_cvt_pk_bf16_f32 v{o+k}, v{u+2*k}, v{u+2*k+1}")
        so = "0" if j < 4 else f"s{30 + j//4}"
        if nostore:
            continue
        e(f"    buffer_store_dwordx4 v[{o}:{o+3}], v{V_OFF}, s[16:19], {so} offen offset:{(j%4)*ROWB} {st_flags}".rstrip())
    if stamp:
        emit_stamp_tail(e, nw)
    e("L_end:")
    e("    s_endpgm")
    e('.section .rodata,"a"')
    e(".p2align 6")
    e(f".amdhsa_kernel {name}_kernel")
    e(f"  .amdhsa_next_free_vgpr {nv}")
    e(f"  .amdhsa_next_free_sgpr {72 if stamp else 48}")
    e(f"  .amdhsa_accum_offset {(nv+3)//4*4}")
    e("  .amdhsa_group_segment_fixed_size 0")
    e("  .amdhsa_kernarg_size 48")
    e("  .amdhsa_user_sgpr_count 2")
    e("  .amdhsa_user_sgpr_kernarg_segment_ptr 1")
    e("  .amdhsa_system_sgpr_workgroup_id_x 1")
    e(".end_amdhsa_kernel")
    return "\n".join(L) + "\n"

if __name__ == "__main__":
    ap = argparse.ArgumentParser()
    ap.add_argument("out")
    ap.add_argument("--nw", type=int, default=4)
    ap.add_argument("--ld", default="")
    ap.add_argument("--st", default="")
    ap.add_argument("--lds", type=int, default=None)
    ap.add_argument("--nokeep", action="store_true")
    ap.add_argument("--nopk", action="store_true")
    ap.add_argument("--gbfirst", action="store_true")
    ap.add_argument("--nostore", action="store_true")
    ap.add_argument("--stamp", action="store_true")
    ap.add_argument("--noload", action="store_true")
    ap.add_argument("--xcdmap", action="store_true")
    a = ap.parse_args()
    open(a.out, "w").write(gen(a.nw, a.ld, a.st, a.lds, not a.nokeep, not a.nopk, a.gbfirst, a.nostore, a.stamp, a.xcdmap, a.noload))
```

```python
import argparse
B, S, D = 1024, 32, 448
ROWB = D * 2
BATCHB = S * ROWB
NAME = "standalone__grn__sampling"

def gen(ld="nt", st="nt", keep=True, stamp=False, gbpos=16, lds=None, nb=1, prio=None):
    nw = 2
    rows = S // nw
    L = []
    e = L.append
    wpw = nw * nb
    G = B // nb
    need = wpw * 2 * ROWB
    lds = need if lds is None else max(lds, need)
    e(f"; @launch grid=({G},1,1) block=({64*wpw},1,1) lds={lds}")
    e('.amdgcn_target "amdgcn-amd-amdhsa--gfx950"')
    e(".text")
    e(f".globl {NAME}_kernel")
    e(".p2align 8")
    e(f".type {NAME}_kernel,@function")
    e(f"{NAME}_kernel:")
    V_A0, V_A1, V_GOFF, V_SUM, V_K, V_LW, V_LR = 1, 2, 3, 4, 5, 6, 7
    ACC, GG, BB, TMP, RD, GRAW = 8, 16, 24, 32, 40, 56
    DATA = 64
    nv = DATA + rows * (8 if keep else 4)
    def raw(j):
        return DATA + 8 * j + 4 if keep else DATA + 4 * j
    def addr(j):
        return (V_A0, (j - 4) * ROWB) if j < 9 else (V_A1, (j - 13) * ROWB)
    if stamp:
        e("    s_memrealtime s[40:41]")
        e("    s_load_dwordx2 s[50:51], s[0:1], 40")
        e("    s_mov_b32 s64, s2")
    e("    s_load_dwordx8 s[4:11], s[0:1], 0")
    e(f"    v_lshrrev_b32 v{V_A0}, 6, v0")
    e(f"    s_mul_i32 s3, s2, {BATCHB*nb}")
    e(f"    v_mul_u32_u24 v{V_A0}, {rows*ROWB - 1024}, v{V_A0}")
    e(f"    s_add_u32 s3, s3, {4*ROWB}")
    e(f"    v_lshl_add_u32 v{V_A0}, v0, 4, v{V_A0}")
    assert G & (G - 1) == 0
    e(f"    s_lshr_b32 s12, s2, {G.bit_length()-1}")
    e(f"    v_add_u32 v{V_A0}, s3, v{V_A0}")
    e("    s_cbranch_scc1 L_end")
    e("    s_mov_b32 exec_hi, 0x00ffffff")
    e(f"    v_add_u32 v{V_A1}, {9*ROWB}, v{V_A0}")
    if prio is not None:
        e(f"    s_setprio {prio}")
    e("    s_waitcnt lgkmcnt(0)")
    if stamp:
        e("    s_memrealtime s[42:43]")
    order = []
    def ld_x(j):
        a, off = addr(j)
        e(f"    global_load_dwordx4 v[{raw(j)}:{raw(j)+3}], v{a}, s[4:5] offset:{off} {ld}".rstrip())
        order.append(("x", j))
    def ld_gb():
        e(f"    v_and_b32 v{V_GOFF}, 63, v0")
        e(f"    v_lshlrev_b32 v{V_GOFF}, 4, v{V_GOFF}")
        e(f"    global_load_dwordx4 v[{GRAW}:{GRAW+3}], v{V_GOFF}, s[6:7]")
        e(f"    global_load_dwordx4 v[{GRAW+4}:{GRAW+7}], v{V_GOFF}, s[8:9]")
        order.extend(["g", "b"])
    for j in range(rows):
        if j == gbpos:
            ld_gb()
        ld_x(j)
    if gbpos >= rows:
        ld_gb()
    e(f"    v_lshrrev_b32 v{V_LW}, 6, v0")
    e(f"    v_mul_u32_u24 v{V_LW}, {2*ROWB}, v{V_LW}")
    if nb > 1:
        e(f"    v_lshrrev_b32 v{V_LR}, 7, v0")
        e(f"    v_mul_u32_u24 v{V_LR}, {4*ROWB}, v{V_LR}")
        e(f"    v_add_u32 v{V_LR}, v{V_LR}, v{V_GOFF}")
    else:
        V_LR = V_GOFF
    e(f"    v_add_u32 v{V_LW}, v{V_LW}, v{V_GOFF}")
    e("    s_mov_b32 s28, 0xffff0000")
    def wait_for(tag):
        idx = order.index(tag)
        e(f"    s_waitcnt vmcnt({len(order) - 1 - idx})")
    def unpack(dst, src):
        for k in range(4):
            e(f"    v_lshlrev_b32 v{dst+2*k}, 16, v{src+k}")
            e(f"    v_and_b32 v{dst+2*k+1}, s28, v{src+k}")
    for j in range(rows):
        wait_for(("x", j))
        if stamp and j == 0:
            e("    s_memrealtime s[44:45]")
        if stamp and j == rows - 1:
            e("    s_memrealtime s[46:47]")
        u = DATA + 8 * j if keep else TMP
        unpack(u, raw(j))
        for k in range(4):
            a, x = ACC + 2 * k, u + 2 * k
            if j == 0:
                e(f"    v_pk_mul_f32 v[{a}:{a+1}], v[{x}:{x+1}], v[{x}:{x+1}]")
            else:
                e(f"    v_pk_fma_f32 v[{a}:{a+1}], v[{x}:{x+1}], v[{x}:{x+1}], v[{a}:{a+1}]")
    e(f"    ds_write_b128 v{V_LW}, v[{ACC}:{ACC+3}]")
    e(f"    ds_write_b128 v{V_LW}, v[{ACC+4}:{ACC+7}] offset:{ROWB}")
    if gbpos >= rows:
        e("    s_waitcnt vmcnt(0)")
    unpack(GG, GRAW)
    unpack(BB, GRAW + 4)
    e("    s_mov_b64 exec, -1")
    e(f"    v_mov_b32 v{V_SUM}, 0")
    e(f"    v_mov_b32 v{V_K}, 0x3b124925")
    e("    s_mov_b32 exec_hi, 0x00ffffff")
    e("    s_waitcnt lgkmcnt(0)")
    e("    s_barrier")
    for w in range(2):
        for h in range(2):
            r = RD + 8 * w + 4 * h
            e(f"    ds_read_b128 v[{r}:{r+3}], v{V_LR} offset:{w*2*ROWB + h*ROWB}")
    e("    s_waitcnt lgkmcnt(0)")
    for k in range(0, 8, 2):
        e(f"    v_pk_add_f32 v[{ACC+k}:{ACC+k+1}], v[{RD+k}:{RD+k+1}], v[{RD+8+k}:{RD+8+k+1}]")
    for k in range(8):
        e(f"    v_sqrt_f32 v{ACC+k}, v{ACC+k}")
    e("    s_nop 0")
    for k in range(4):
        e(f"    v_add_f32 v{TMP+k}, v{ACC+2*k}, v{ACC+2*k+1}")
    e(f"    v_add_f32 v{TMP}, v{TMP}, v{TMP+1}")
    e(f"    v_add_f32 v{TMP+2}, v{TMP+2}, v{TMP+3}")
    e(f"    v_mul_f32 v{GG}, v{GG}, v{ACC}")
    e(f"    v_add_f32 v{V_SUM}, v{TMP}, v{TMP+2}")
    e("    s_mov_b64 exec, -1")
    gi = 1
    def filler(n):
        nonlocal gi
        for _ in range(n):
            if gi < 8:
                e(f"    v_mul_f32 v{GG+gi}, v{GG+gi}, v{ACC+gi}")
                gi += 1
            else:
                e("    s_nop 0")
    filler(2)
    for sh in (1, 2, 4, 8):
        e(f"    v_add_f32_dpp v{V_SUM}, v{V_SUM}, v{V_SUM} row_shr:{sh} row_mask:0xf bank_mask:0xf bound_ctrl:1")
        filler(2)
    e(f"    v_add_f32_dpp v{V_SUM}, v{V_SUM}, v{V_SUM} row_bcast:15 row_mask:0xa bank_mask:0xf")
    filler(2)
    e(f"    v_add_f32_dpp v{V_SUM}, v{V_SUM}, v{V_SUM} row_bcast:31 row_mask:0xc bank_mask:0xf")
    e(f"    v_fmaak_f32 v{V_SUM}, v{V_SUM}, v{V_K}, 0x358637bd")
    e(f"    v_rcp_f32 v{V_SUM}, v{V_SUM}")
    e("    s_nop 0")
    e(f"    v_readlane_b32 s29, v{V_SUM}, 63")
    e("    s_mov_b32 exec_hi, 0x00ffffff")
    e("    s_nop 0")
    for k in range(8):
        e(f"    v_fma_f32 v{GG+k}, v{GG+k}, s29, 1.0")
    for j in range(rows):
        if keep:
            u = DATA + 8 * j; o = u
        else:
            u = TMP; o = raw(j)
            unpack(u, raw(j))
        for k in range(4):
            e(f"    v_pk_fma_f32 v[{u+2*k}:{u+2*k+1}], v[{u+2*k}:{u+2*k+1}], v[{GG+2*k}:{GG+2*k+1}], v[{BB+2*k}:{BB+2*k+1}]")
        for k in range(4):
            e(f"    v_cvt_pk_bf16_f32 v{o+k}, v{u+2*k}, v{u+2*k+1}")
        a, off = addr(j)
        e(f"    global_store_dwordx4 v{a}, v[{o}:{o+3}], s[10:11] offset:{off} {st}".rstrip())
    if stamp:
        from gen import emit_stamp_tail
        emit_stamp_tail(e, wpw)
    e("L_end:")
    e("    s_endpgm")
    e('.section .rodata,"a"')
    e(".p2align 6")
    e(f".amdhsa_kernel {NAME}_kernel")
    e(f"  .amdhsa_next_free_vgpr {nv}")
    e(f"  .amdhsa_next_free_sgpr {72 if stamp else 32}")
    e(f"  .amdhsa_accum_offset {(nv+3)//4*4}")
    e("  .amdhsa_group_segment_fixed_size 0")
    e("  .amdhsa_kernarg_size 48")
    e("  .amdhsa_user_sgpr_count 2")
    e("  .amdhsa_user_sgpr_kernarg_segment_ptr 1")
    e("  .amdhsa_system_sgpr_workgroup_id_x 1")
    e(".end_amdhsa_kernel")
    return "\n".join(L) + "\n"

if __name__ == "__main__":
    ap = argparse.ArgumentParser()
    ap.add_argument("out")
    ap.add_argument("--ld", default="nt")
    ap.add_argument("--st", default="nt")
    ap.add_argument("--nokeep", action="store_true")
    ap.add_argument("--stamp", action="store_true")
    ap.add_argument("--gbpos", type=int, default=16)
    ap.add_argument("--lds", type=int, default=None)
    ap.add_argument("--nb", type=int, default=1)
    ap.add_argument("--prio", type=int, default=None)
    a = ap.parse_args()
    open(a.out, "w").write(gen(a.ld, a.st, not a.nokeep, a.stamp, a.gbpos, a.lds, a.nb, a.prio))
```

```python
import argparse
B, S, D = 1024, 32, 448
ROWB = D * 2
BATCHB = S * ROWB
NAME = "standalone__grn__sampling"

def gen(ld="nt", st="nt", keep=True, stamp=False, gbpos=16, lds=None, nb=1, prio=None, wmap=0, touch=0):
    nw = 2
    rows = S // nw
    L = []
    e = L.append
    wpw = nw * nb
    G = B // nb
    need = wpw * 2 * ROWB
    lds = need if lds is None else max(lds, need)
    e(f"; @launch grid=({G},1,1) block=({64*wpw},1,1) lds={lds}")
    e('.amdgcn_target "amdgcn-amd-amdhsa--gfx950"')
    e(".text")
    e(f".globl {NAME}_kernel")
    e(".p2align 8")
    e(f".type {NAME}_kernel,@function")
    e(f"{NAME}_kernel:")
    V_A0, V_A1, V_GOFF, V_SUM, V_K, V_LW, V_LR = 1, 2, 3, 4, 5, 6, 7
    ACC, GG, BB, TMP, RD, GRAW = 8, 16, 24, 32, 40, 56
    DATA = 64
    V_TCH = 7 if nb == 1 else 0
    assert not (touch and nb > 1)
    nv = DATA + rows * (8 if keep else 4)
    def raw(j):
        return DATA + 8 * j + 4 if keep else DATA + 4 * j
    def addr(j):
        return (V_A0, (j - 4) * ROWB) if j < 9 else (V_A1, (j - 13) * ROWB)
    if stamp:
        e("    s_memrealtime s[40:41]")
        e("    s_load_dwordx2 s[50:51], s[0:1], 40")
        e("    s_mov_b32 s64, s2")
    e("    s_load_dwordx8 s[4:11], s[0:1], 0")
    e(f"    v_lshrrev_b32 v{V_A0}, 6, v0")
    if wmap == 0:
        e(f"    s_mul_i32 s3, s2, {BATCHB*nb}")
    elif wmap == 1:
        e("    s_and_b32 s13, s2, 255")
        e("    s_lshr_b32 s14, s2, 8")
        e("    s_lshl2_add_u32 s13, s13, s14")
        e(f"    s_mul_i32 s3, s13, {BATCHB}")
    elif wmap == 2:
        e("    s_and_b32 s13, s2, 7")
        e("    s_lshr_b32 s14, s2, 3")
        e("    s_lshl_b32 s13, s13, 7")
        e("    s_add_u32 s13, s13, s14")
        e(f"    s_mul_i32 s3, s13, {BATCHB}")
    elif wmap == 3:
        e("    s_and_b32 s13, s2, 7")
        e("    s_lshl_b32 s13, s13, 7")
        e("    s_bfe_u32 s14, s2, 0x50003")
        e("    s_lshl2_add_u32 s13, s14, s13")
        e("    s_bfe_u32 s14, s2, 0x20008")
        e("    s_add_u32 s13, s13, s14")
        e(f"    s_mul_i32 s3, s13, {BATCHB}")
    e(f"    v_mul_u32_u24 v{V_A0}, {rows*ROWB - 1024}, v{V_A0}")
    e(f"    s_add_u32 s3, s3, {4*ROWB}")
    e(f"    v_lshl_add_u32 v{V_A0}, v0, 4, v{V_A0}")
    assert G & (G - 1) == 0
    e(f"    s_lshr_b32 s12, s2, {G.bit_length()-1}")
    e(f"    v_add_u32 v{V_A0}, s3, v{V_A0}")
    e("    s_cbranch_scc1 L_end")
    e("    s_mov_b32 exec_hi, 0x00ffffff")
    e(f"    v_add_u32 v{V_A1}, {9*ROWB}, v{V_A0}")
    if prio is not None:
        e(f"    s_setprio {prio}")
    e("    s_waitcnt lgkmcnt(0)")
    if stamp:
        e("    s_memrealtime s[42:43]")
    order = []
    def ld_x(j):
        a, off = addr(j)
        e(f"    global_load_dwordx4 v[{raw(j)}:{raw(j)+3}], v{a}, s[4:5] offset:{off} {ld}".rstrip())
        order.append(("x", j))
    def ld_gb():
        e(f"    v_and_b32 v{V_GOFF}, 63, v0")
        e(f"    v_lshlrev_b32 v{V_GOFF}, 4, v{V_GOFF}")
        e(f"    global_load_dwordx4 v[{GRAW}:{GRAW+3}], v{V_GOFF}, s[6:7]")
        e(f"    global_load_dwordx4 v[{GRAW+4}:{GRAW+7}], v{V_GOFF}, s[8:9]")
        order.extend(["g", "b"])
    for j in range(rows):
        if j == gbpos:
            ld_gb()
        ld_x(j)
    if gbpos >= rows:
        ld_gb()
    if touch:
        e("    s_movk_i32 s30, 255")
        e(f"    v_mad_u32_u24 v{V_TCH}, v{V_GOFF}, s30, v{V_A0}")
        e(f"    s_mov_b64 exec, {15 if touch == 4 else 1}")
        e(f"    global_load_dword v{V_TCH}, v{V_TCH}, s[10:11] offset:{-4*ROWB} nt")
        e("    s_mov_b32 exec_lo, -1")
        e("    s_mov_b32 exec_hi, 0x00ffffff")
        order.append("t")
    e(f"    v_lshrrev_b32 v{V_LW}, 6, v0")
    e(f"    v_mul_u32_u24 v{V_LW}, {2*ROWB}, v{V_LW}")
    if nb > 1:
        e(f"    v_lshrrev_b32 v{V_LR}, 7, v0")
        e(f"    v_mul_u32_u24 v{V_LR}, {4*ROWB}, v{V_LR}")
        e(f"    v_add_u32 v{V_LR}, v{V_LR}, v{V_GOFF}")
    else:
        V_LR = V_GOFF
    e(f"    v_add_u32 v{V_LW}, v{V_LW}, v{V_GOFF}")
    e("    s_mov_b32 s28, 0xffff0000")
    def wait_for(tag):
        idx = order.index(tag)
        e(f"    s_waitcnt vmcnt({len(order) - 1 - idx})")
    def unpack(dst, src):
        for k in range(4):
            e(f"    v_lshlrev_b32 v{dst+2*k}, 16, v{src+k}")
            e(f"    v_and_b32 v{dst+2*k+1}, s28, v{src+k}")
    for j in range(rows):
        wait_for(("x", j))
        if stamp and j == 0:
            e("    s_memrealtime s[44:45]")
        if stamp and j == rows - 1:
            e("    s_memrealtime s[46:47]")
        u = DATA + 8 * j if keep else TMP
        unpack(u, raw(j))
        for k in range(4):
            a, x = ACC + 2 * k, u + 2 * k
            if j == 0:
                e(f"    v_pk_mul_f32 v[{a}:{a+1}], v[{x}:{x+1}], v[{x}:{x+1}]")
            else:
                e(f"    v_pk_fma_f32 v[{a}:{a+1}], v[{x}:{x+1}], v[{x}:{x+1}], v[{a}:{a+1}]")
    e(f"    ds_write_b128 v{V_LW}, v[{ACC}:{ACC+3}]")
    e(f"    ds_write_b128 v{V_LW}, v[{ACC+4}:{ACC+7}] offset:{ROWB}")
    if gbpos >= rows:
        e(f"    s_waitcnt vmcnt({1 if touch else 0})")
    unpack(GG, GRAW)
    unpack(BB, GRAW + 4)
    e("    s_mov_b64 exec, -1")
    e(f"    v_mov_b32 v{V_SUM}, 0")
    e(f"    v_mov_b32 v{V_K}, 0x3b124925")
    e("    s_mov_b32 exec_hi, 0x00ffffff")
    e("    s_waitcnt lgkmcnt(0)")
    e("    s_barrier")
    for w in range(2):
        for h in range(2):
            r = RD + 8 * w + 4 * h
            e(f"    ds_read_b128 v[{r}:{r+3}], v{V_LR} offset:{w*2*ROWB + h*ROWB}")
    e("    s_waitcnt lgkmcnt(0)")
    for k in range(0, 8, 2):
        e(f"    v_pk_add_f32 v[{ACC+k}:{ACC+k+1}], v[{RD+k}:{RD+k+1}], v[{RD+8+k}:{RD+8+k+1}]")
    for k in range(8):
        e(f"    v_sqrt_f32 v{ACC+k}, v{ACC+k}")
    e("    s_nop 0")
    for k in range(4):
        e(f"    v_add_f32 v{TMP+k}, v{ACC+2*k}, v{ACC+2*k+1}")
    e(f"    v_add_f32 v{TMP}, v{TMP}, v{TMP+1}")
    e(f"    v_add_f32 v{TMP+2}, v{TMP+2}, v{TMP+3}")
    e(f"    v_mul_f32 v{GG}, v{GG}, v{ACC}")
    e(f"    v_add_f32 v{V_SUM}, v{TMP}, v{TMP+2}")
    e("    s_mov_b64 exec, -1")
    gi = 1
    def filler(n):
        nonlocal gi
        for _ in range(n):
            if gi < 8:
                e(f"    v_mul_f32 v{GG+gi}, v{GG+gi}, v{ACC+gi}")
                gi += 1
            else:
                e("    s_nop 0")
    filler(2)
    for sh in (1, 2, 4, 8):
        e(f"    v_add_f32_dpp v{V_SUM}, v{V_SUM}, v{V_SUM} row_shr:{sh} row_mask:0xf bank_mask:0xf bound_ctrl:1")
        filler(2)
    e(f"    v_add_f32_dpp v{V_SUM}, v{V_SUM}, v{V_SUM} row_bcast:15 row_mask:0xa bank_mask:0xf")
    filler(2)
    e(f"    v_add_f32_dpp v{V_SUM}, v{V_SUM}, v{V_SUM} row_bcast:31 row_mask:0xc bank_mask:0xf")
    e(f"    v_fmaak_f32 v{V_SUM}, v{V_SUM}, v{V_K}, 0x358637bd")
    e(f"    v_rcp_f32 v{V_SUM}, v{V_SUM}")
    e("    s_nop 0")
    e(f"    v_readlane_b32 s29, v{V_SUM}, 63")
    e("    s_mov_b32 exec_hi, 0x00ffffff")
    e("    s_nop 0")
    for k in range(8):
        e(f"    v_fma_f32 v{GG+k}, v{GG+k}, s29, 1.0")
    for j in range(rows):
        if keep:
            u = DATA + 8 * j; o = u
        else:
            u = TMP; o = raw(j)
            unpack(u, raw(j))
        for k in range(4):
            e(f"    v_pk_fma_f32 v[{u+2*k}:{u+2*k+1}], v[{u+2*k}:{u+2*k+1}], v[{GG+2*k}:{GG+2*k+1}], v[{BB+2*k}:{BB+2*k+1}]")
        for k in range(4):
            e(f"    v_cvt_pk_bf16_f32 v{o+k}, v{u+2*k}, v{u+2*k+1}")
        a, off = addr(j)
        e(f"    global_store_dwordx4 v{a}, v[{o}:{o+3}], s[10:11] offset:{off} {st}".rstrip())
    if stamp:
        from gen import emit_stamp_tail
        emit_stamp_tail(e, wpw)
    e("L_end:")
    e("    s_endpgm")
    e('.section .rodata,"a"')
    e(".p2align 6")
    e(f".amdhsa_kernel {NAME}_kernel")
    e(f"  .amdhsa_next_free_vgpr {nv}")
    e(f"  .amdhsa_next_free_sgpr {72 if stamp else 32}")
    e(f"  .amdhsa_accum_offset {(nv+3)//4*4}")
    e("  .amdhsa_group_segment_fixed_size 0")
    e("  .amdhsa_kernarg_size 48")
    e("  .amdhsa_user_sgpr_count 2")
    e("  .amdhsa_user_sgpr_kernarg_segment_ptr 1")
    e("  .amdhsa_system_sgpr_workgroup_id_x 1")
    e(".end_amdhsa_kernel")
    return "\n".join(L) + "\n"

if __name__ == "__main__":
    ap = argparse.ArgumentParser()
    ap.add_argument("out")
    ap.add_argument("--ld", default="nt")
    ap.add_argument("--st", default="nt")
    ap.add_argument("--nokeep", action="store_true")
    ap.add_argument("--stamp", action="store_true")
    ap.add_argument("--gbpos", type=int, default=16)
    ap.add_argument("--lds", type=int, default=None)
    ap.add_argument("--nb", type=int, default=1)
    ap.add_argument("--prio", type=int, default=None)
    ap.add_argument("--wmap", type=int, default=0)
    ap.add_argument("--touch", type=int, default=0)
    a = ap.parse_args()
    open(a.out, "w").write(gen(a.ld, a.st, not a.nokeep, a.stamp, a.gbpos, a.lds, a.nb, a.prio, a.wmap, a.touch))
```
